```python
import torch

def _softmax(x, axis=-1):
    return torch.softmax(x, dim=axis)
def _gelu(x):
    return torch.nn.functional.gelu(x, approximate="tanh")
def _silu(x):
    return torch.nn.functional.silu(x)
def _sigmoid(x):
    return torch.sigmoid(x)
def _layernorm(x, axis=-1, eps=1e-5):
    m = x.mean(dim=axis, keepdim=True)
    v = x.var(dim=axis, keepdim=True, unbiased=False)
    return (x - m) / torch.sqrt(v + eps)
def _scatter_add(tgt, idx, src, axis=0):
    return tgt.clone().index_add_(axis, idx, src)
def _segment_sum(src, seg, n):
    out = torch.zeros((n,) + src.shape[1:], dtype=src.dtype)
    return out.index_add_(0, seg, src)
def _pad(x, pw):
    flat = tuple(v for pair in reversed(pw) for v in pair)
    return torch.nn.functional.pad(x, flat)

kernel_name = 'parallel_sum__mha_block_cached__geglu_ffn__decode'

def setup_inputs():

    _w = (lambda a: (lambda t: t.to(torch.bfloat16) if t.is_floating_point() else t)(torch.as_tensor(a)))
    def _A_setup():
        B, Sq, D = 1, 1, 640
        H, Sk, Dh = 32, 32768, 192
        return {
            "x": _w((lambda *s: torch.randn(*s, dtype=torch.bfloat16) * 0.05)(B, Sq, D)),
            "k_cache": _w((lambda *s: torch.randn(*s, dtype=torch.bfloat16) * 3.2)(B, H, Sk, Dh)),
            "v_cache": _w((lambda *s: torch.randn(*s, dtype=torch.bfloat16) * 1.6)(B, H, Sk, Dh)),
            "wq": _w((lambda *s: torch.randn(*s, dtype=torch.bfloat16) * 3.2)(D, H * Dh) * (D ** -0.5)),
            "wo": _w((lambda *s: torch.randn(*s, dtype=torch.bfloat16) * 1.6)(H * Dh, D) * ((H * Dh) ** -0.5)),
        }
    _A_in = _A_setup()

    def _B_setup():
        B, S, D, F = 1, 1, 640, 1536
        return {
            "x": _w((lambda *s: torch.randn(*s, dtype=torch.bfloat16) * 0.05)(B, S, D)),
            "w_gate": _w((lambda *s: torch.randn(*s, dtype=torch.bfloat16) * 0.05)(D, F)),
            "w_up": _w((lambda *s: torch.randn(*s, dtype=torch.bfloat16) * 0.05)(D, F)),
            "w_down": _w((lambda *s: torch.randn(*s, dtype=torch.bfloat16) * 0.05)(F, D)),
        }
    _B_in = _B_setup()

    return {
        "A_x": _A_in["x"],
        "A_k_cache": _A_in["k_cache"],
        "A_v_cache": _A_in["v_cache"],
        "A_wq": _A_in["wq"],
        "A_wo": _A_in["wo"],
        "B_x": _B_in["x"],
        "B_w_gate": _B_in["w_gate"],
        "B_w_up": _B_in["w_up"],
        "B_w_down": _B_in["w_down"],
    }

def reference(A_x, A_k_cache, A_v_cache, A_wq, A_wo, B_x, B_w_gate, B_w_up, B_w_down):
    def _A_ref(x, k_cache, v_cache, wq, wo):
        B, Sq, D = x.shape
        H, Dh = 32, 192
        q = (lambda x, *d: x.permute(*d))((x @ wq).reshape(B, Sq, H, Dh), 0, 2, 1, 3)
        scores = torch.einsum("bhqd,bhkd->bhqk", q, k_cache) * (Dh ** -0.5)
        p = _softmax(scores, axis=-1)
        o = torch.einsum("bhqk,bhkd->bhqd", p, v_cache)
        return (lambda x, *d: x.permute(*d))(o, 0, 2, 1, 3).reshape(B, Sq, H * Dh) @ wo

    def _B_ref(x, w_gate, w_up, w_down):
        return (_gelu(x @ w_gate) * (x @ w_up)) @ w_down

    x = A_x
    xn = _layernorm(x, axis=-1)
    return x + _A_ref(xn, A_k_cache, A_v_cache, A_wq, A_wo) + _B_ref(xn, B_w_gate, B_w_up, B_w_down)
```

```python
import re

TRANS = ("v_exp_f32", "v_log_f32", "v_rcp_f32", "v_rsq_f32", "v_sqrt_f32", "v_sin_f32", "v_cos_f32")
REG = re.compile(r"^-?(?:abs\()?([vsa])(\d+)\)?$")
RNG = re.compile(r"^-?([vsa])\[(\d+):(\d+)\]$")


def regs(tok):
    tok = tok.strip()
    m = REG.match(tok)
    if m:
        return {(m.group(1), int(m.group(2)))}
    m = RNG.match(tok)
    if m:
        return {(m.group(1), i) for i in range(int(m.group(2)), int(m.group(3)) + 1)}
    if tok in ("vcc", "vcc_lo", "vcc_hi"):
        return {("s", "vcc")}
    if tok in ("exec", "exec_lo", "exec_hi"):
        return {("s", "exec")}
    if tok == "m0":
        return {("s", "m0")}
    return set()


class Ins:
    def __init__(self, text):
        self.text = text
        t = text.split(";")[0].strip()
        self.label = t[:-1] if t.endswith(":") else None
        self.is_ins = bool(t) and self.label is None and not t.startswith(".")
        self.dst = set()
        self.src = set()
        self.op = ""
        self.ops = []
        if not self.is_ins:
            return
        parts = t.split(None, 1)
        self.op = parts[0]
        rest = parts[1] if len(parts) > 1 else ""
        toks = [x.strip() for x in rest.split(",")] if rest else []
        mods = ""
        fixed = []
        depth = 0
        cur = ""
        for ch in rest:
            if ch == "[":
                depth += 1
            if ch == "]":
                depth -= 1
            if ch == "," and depth == 0:
                fixed.append(cur.strip())
                cur = ""
            else:
                cur += ch
        if cur.strip():
            fixed.append(cur.strip())
        if fixed:
            last = fixed[-1].split(None, 1)
            fixed[-1] = last[0]
            mods = last[1] if len(last) > 1 else ""
        self.ops = fixed
        self.mods = mods
        op = self.op
        self.valu = op.startswith("v_")
        self.mfma = op.startswith("v_mfma")
        self.dpp = "_dpp" in op
        self.perm = op.startswith("v_permlane")
        self.dot = op.startswith("v_dot")
        self.trans = any(op.startswith(x) for x in TRANS)
        self.vmem = op.startswith(("buffer_", "global_"))
        self.ds = op.startswith("ds_")
        self.salu = op.startswith("s_")
        self.ldsdma = self.vmem and " lds" in (" " + mods)
        self.lane_rd = op.startswith(("v_readlane", "v_readfirstlane"))
        R = [regs(x) for x in fixed]
        if self.valu:
            if self.perm:
                self.dst = R[0] | R[1]
                self.src = R[0] | R[1]
            else:
                self.dst = set(R[0])
                n = 1
                if "_co_" in op:
                    self.dst |= R[1]
                    n = 2
                for r in R[n:]:
                    self.src |= r
                if op.startswith(("v_fmac", "v_dot2c", "v_writelane")) or self.dpp:
                    self.src |= R[0]
                if op.startswith("v_cndmask") and len(fixed) == 3:
                    self.src |= {("s", "vcc")}
        elif self.vmem:
            store = "store" in op or ("atomic" in op and "sc0" not in mods)
            if op.startswith("buffer_"):
                if self.ldsdma:
                    for r in R:
                        self.src |= r
                    self.src |= {("s", "m0")}
                elif store:
                    for r in R:
                        self.src |= r
                else:
                    self.dst = set(R[0])
                    for r in R[1:]:
                        self.src |= r
                    if "atomic" in op:
                        self.src |= R[0]
                self.data = R[0] if store else set()
            else:
                if store:
                    for r in R:
                        self.src |= r
                    self.data = R[1]
                else:
                    self.dst = set(R[0])
                    for r in R[1:]:
                        self.src |= r
                    self.data = set()
            self.wide_store = store and ("x3" in op or "x4" in op)
        elif self.ds:
            if "read" in op or "rtn" in op or "permute" in op or "swizzle" in op:
                self.dst = set(R[0])
                for r in R[1:]:
                    self.src |= r
            else:
                for r in R:
                    self.src |= r
        elif self.salu:
            nodst = ("s_cmp", "s_cbranch", "s_branch", "s_waitcnt", "s_barrier", "s_nop", "s_endpgm", "s_setprio",
                     "s_sleep", "s_setpc", "s_bitcmp")
            if op.startswith(nodst):
                for r in R:
                    self.src |= r
            else:
                self.dst = set(R[0]) if R else set()
                for r in R[1:]:
                    self.src |= r
                if "saveexec" in op:
                    self.dst |= {("s", "exec")}

    def states(self):
        if not self.is_ins:
            return 0
        if self.op == "s_nop":
            return int(self.ops[0], 0) + 1
        return 1


def need(p, c):
    n = 0
    vdst = {r for r in p.dst if r[0] in "va"}
    sdst = {r for r in p.dst if r[0] == "s"}
    if p.valu and not p.mfma:
        if c.valu and (c.dpp or c.perm) and vdst & c.src:
            n = max(n, 2)
        if c.lane_rd and vdst & c.src:
            n = max(n, 1)
        if c.mfma and vdst & c.src:
            n = max(n, 2)
        if p.trans and vdst & c.src:
            n = max(n, 1)
        if p.dot and vdst & (c.src | c.dst):
            same_c = c.op == p.op and not (vdst & (regs(c.ops[1]) | regs(c.ops[2])))
            if not same_c:
                n = max(n, 3)
        if sdst:
            if c.valu and sdst & c.src:
                n = max(n, 4 if c.op.startswith(("v_readlane", "v_writelane")) else 2)
            if c.vmem and sdst & c.src:
                n = max(n, 5)
    if p.mfma:
        passes = 4 if "16x16x32" in p.op else 8
        full = {4: 8, 8: 12}[passes]
        if c.mfma:
            if vdst & (regs(c.ops[1]) | regs(c.ops[2])):
                n = max(n, full)
            cs = regs(c.ops[3])
            if vdst & cs and cs != vdst:
                n = max(n, full - 2)
        elif vdst & (c.src | c.dst):
            n = max(n, full)
        if c.valu and not c.mfma and regs(p.ops[3]) & c.dst:
            n = max(n, {4: 3, 8: 7}[passes])
    if p.salu and ("s", "m0") in p.dst and ("s", "m0") in c.src and (c.vmem or c.valu or c.ds):
        n = max(n, 1)
    if p.vmem and getattr(p, "wide_store", False) and p.data & c.dst:
        n = max(n, 2)
    return n


MAXW = 12


def fix(text, calls=None):
    lines = [Ins(l) for l in text.split("\n")]
    inserted = 0
    start = 0
    while True:
        labels = {l.label: i for i, l in enumerate(lines) if l.label}
        preds = {}
        call_sites = {}
        for i, l in enumerate(lines):
            if l.is_ins and l.op.startswith(("s_cbranch", "s_branch")):
                preds.setdefault(labels[l.ops[0]], []).append(i)
            if l.is_ins and l.op == "s_call_b64":
                preds.setdefault(labels[l.ops[1]], []).append(i)
                call_sites.setdefault(l.ops[0], []).append(i)
        rets = {}
        for i, l in enumerate(lines):
            if l.is_ins and l.op == "s_setpc_b64":
                for cs in call_sites.get(l.ops[0], []):
                    rets.setdefault(cs, []).append(i)

        def back(i):
            out = []
            if lines[i].label:
                out += preds.get(i, [])
            j = i - 1
            if j >= 0:
                pj = lines[j]
                if pj.is_ins and pj.op == "s_call_b64":
                    out += rets.get(j, [])
                elif not (pj.is_ins and pj.op in ("s_branch", "s_endpgm", "s_setpc_b64")):
                    out.append(j)
            return out

        change = None
        for i, c in enumerate(lines):
            if i < start or not c.is_ins or c.op == "s_nop":
                continue
            worst = 0
            stack = [(j, 0) for j in back(i)]
            seen = set()
            while stack:
                j, d = stack.pop()
                if (j, d) in seen or d >= MAXW:
                    continue
                seen.add((j, d))
                p = lines[j]
                if p.is_ins:
                    worst = max(worst, need(p, c) - d)
                for k in back(j):
                    stack.append((k, d + p.states()))
            if worst > 0:
                change = (i, worst)
                break
        if not change:
            break
        i, w = change
        lines.insert(i, Ins(f"s_nop {w - 1}"))
        inserted += 1
        start = i
    return "\n".join(l.text for l in lines), inserted
```

```python
import sys, struct
import hazard

KNAME = "parallel_sum__mha_block_cached__geglu_ffn__decode_kernel"
HEADER = open("parallel_sum__mha_block_cached__geglu_ffn__decode.s.ref").read().split("; Override launch")[0]

def f32(x):
    return "0x%08x" % struct.unpack("<I", struct.pack("<f", x))[0]

HEAD_BYTES = 12582912
TILE = 6144
NTILES = 2048
ROUNDS = 64
L2E = 1.4426950408889634
SCALE = 192 ** -0.5
P1, P2 = 0, 0x20000
WS_USED = P2 + 40 * 4096
TRACE = 0x100000

class Cfg:
    NP = 3
    D = 6
    paired = False
    STAG = 11
    wq_pol = ""
    wo_pol = ""
    ffn_pol = "nt"
    trace = False
    name = KNAME
    prio = 3
    def __init__(self, **kw):
        for k, v in kw.items():
            assert hasattr(Cfg, k), k
            setattr(self, k, v)

S_H, S_C, S_CNT, S_CUR, S_NXT, S_T0, S_T1, S_T2, S_REG, S_WV = 60, 61, 62, 63, 66, 67, 68, 69, 70, 71
S_RET = "s[64:65]"
KC, KN, VC, VN = "s[28:31]", "s[32:35]", "s[36:39]", "s[40:43]"
RA, RB, RC, RW = "s[44:47]", "s[48:51]", "s[52:55]", "s[56:59]"
V_LANE, V_OFF, V_O, V_W, V_T5, V_T6, V_E1 = 1, 2, 3, 4, 5, 6, 7
ACC, Q, RING = 8, 32, 64
V_M, V_NML, V_L = 44, 45, 46
V_SA, V_SB, V_T, V_A, V_B, V_MX, V_PAL, V_PAH, V_PBL, V_PBH, V_AL = 48, 49, 50, 51, 52, 53, 54, 55, 56, 57, 58
DPPALL = "row_mask:0xf bank_mask:0xf"

def gen(cfg):
    NP, D = cfg.NP, cfg.D
    RSZ = NP * 2 * TILE
    XN = 4 * RSZ
    QP = XN + 2560
    QF = QP + 4 * 784
    PART = QF + 512
    LDS = PART + 8 * 784 + 256
    assert LDS <= 163840 and XN % 16 == 0 and RSZ >= 10240
    nm = cfg.name
    L = []
    def A(s):
        L.extend(x.strip() for x in s.strip("\n").split("\n"))
    lab = lambda x: f"L_{x}" if nm == KNAME else f"{nm}_{x}"
    def srd(r, ptr, size):
        b = int(r[2:r.index(":")])
        A(f"s_mov_b32 s{b}, s{ptr}\ns_mov_b32 s{b+1}, s{ptr+1}\ns_mov_b32 s{b+2}, {size}\ns_mov_b32 s{b+3}, 0x20000")
    def stamp(k):
        if cfg.trace:
            A(f"s_memrealtime s[{76+2*k}:{77+2*k}]" + ("" if k == 0 else "\ns_waitcnt lgkmcnt(0)"))
    def dump_trace(n):
        if cfg.trace:
            A("s_waitcnt lgkmcnt(0)\ns_mov_b64 exec, -1")
            for k in range(n):
                A(f"v_writelane_b32 v60, s{76+2*k}, {k}")
            A(f"s_lshl_b32 s74, s2, 3\ns_add_u32 s74, s74, s3\ns_lshl_b32 s74, s74, 6\ns_add_u32 s74, s74, {TRACE}")
            A(f"v_lshl_add_u32 v61, v{V_LANE}, 2, s74\ns_mov_b64 exec, {(1<<n)-1}\nglobal_store_dword v61, v60, s[26:27]\ns_waitcnt vmcnt(0)")
    def oct_reduce(op, r):
        A(f"{op}_dpp v{r}, v{r}, v{r} quad_perm:[1,0,3,2] {DPPALL}")
        A(f"{op}_dpp v{r}, v{r}, v{r} quad_perm:[2,3,0,1] {DPPALL}")
        A(f"{op}_dpp v{r}, v{r}, v{r} row_half_mirror {DPPALL}")
    def xoct_reduce(op, r, t):
        A(f"{op}_dpp v{r}, v{r}, v{r} row_ror:8 {DPPALL}")
        A(f"v_mov_b32 v{t}, v{r}\nv_permlane16_swap_b32 v{r}, v{t}\n{op} v{r}, v{r}, v{t}")
        A(f"v_mov_b32 v{t}, v{r}\nv_permlane32_swap_b32 v{r}, v{t}\n{op} v{r}, v{r}, v{t}")
    def init_state():
        for i in range(24): A(f"v_mov_b32 v{ACC+i}, 0")
        A(f"v_mov_b32 v{V_M}, 0xff7fffff\nv_mov_b32 v{V_NML}, 0x7f7fffff\nv_mov_b32 v{V_L}, 0")
    def read_q():
        A(f"v_lshlrev_b32 v{V_T5}, 4, v{V_W}\nv_add_u32 v{V_T5}, {QF}, v{V_T5}")
        for j in range(3): A(f"ds_read_b128 v[{Q+4*j}:{Q+4*j+3}], v{V_T5} offset:{128*j}")

    def step_compute(n, tag):
        slot = RING + 4 * n
        if n < 6:
            s = V_SA if n < 3 else V_SB
            j = n % 3
            if j == 0: A(f"v_mov_b32 v{s}, 0")
            for r in range(4): A(f"v_dot2c_f32_bf16 v{s}, v{slot+r}, v{Q+4*j+r}")
            if n == 3: A(f"v_add_f32_dpp v{V_SA}, v{V_SA}, v{V_SA} quad_perm:[1,0,3,2] {DPPALL}")
            if n == 4: A(f"v_add_f32_dpp v{V_SA}, v{V_SA}, v{V_SA} quad_perm:[2,3,0,1] {DPPALL}")
            if n == 5:
                A(f"v_add_f32_dpp v{V_SA}, v{V_SA}, v{V_SA} row_half_mirror {DPPALL}")
                oct_reduce("v_add_f32", V_SB)
                A(f"""v_cvt_pk_bf16_f32 v{V_T}, v{V_SA}, v{V_SB}
                v_lshlrev_b32 v{V_A}, 16, v{V_T}
                v_and_b32 v{V_B}, 0xffff0000, v{V_T}
                v_mul_f32 v{V_A}, {f32(SCALE)}, v{V_A}
                v_mul_f32 v{V_B}, {f32(SCALE)}, v{V_B}
                v_cvt_pk_bf16_f32 v{V_T}, v{V_A}, v{V_B}
                v_lshlrev_b32 v{V_A}, 16, v{V_T}
                v_and_b32 v{V_B}, 0xffff0000, v{V_T}
                v_max_f32 v{V_MX}, v{V_A}, v{V_B}
                v_cmp_gt_f32 vcc, v{V_MX}, v{V_M}
                s_cbranch_vccz {lab('nomax_'+tag)}""")
                xoct_reduce("v_max_f32", V_MX, V_T)
                A(f"""v_max_f32 v{V_M}, v{V_M}, v{V_MX}
                v_mul_f32 v{V_T}, {f32(-L2E)}, v{V_M}
                v_sub_f32 v{V_AL}, v{V_T}, v{V_NML}
                v_exp_f32 v{V_AL}, v{V_AL}
                v_mov_b32 v{V_NML}, v{V_T}
                v_mul_f32 v{V_L}, v{V_L}, v{V_AL}""")
                for i in range(24): A(f"v_mul_f32 v{ACC+i}, v{ACC+i}, v{V_AL}")
                A(f"""{lab('nomax_'+tag)}:
                v_fmamk_f32 v{V_A}, v{V_A}, {f32(L2E)}, v{V_NML}
                v_fmamk_f32 v{V_B}, v{V_B}, {f32(L2E)}, v{V_NML}
                v_exp_f32 v{V_A}, v{V_A}
                v_exp_f32 v{V_B}, v{V_B}
                v_add_f32 v{V_L}, v{V_L}, v{V_A}
                v_cvt_pk_bf16_f32 v{V_T}, v{V_A}, v{V_B}
                v_add_f32 v{V_L}, v{V_L}, v{V_B}
                v_and_b32 v{V_PAL}, 0xffff, v{V_T}
                v_lshlrev_b32 v{V_PAH}, 16, v{V_T}
                v_lshrrev_b32 v{V_PBL}, 16, v{V_T}
                v_and_b32 v{V_PBH}, 0xffff0000, v{V_T}""")
        else:
            u, j = (n - 6) // 3, (n - 6) % 3
            lo, hi = (V_PAL, V_PAH) if u == 0 else (V_PBL, V_PBH)
            for r in range(4):
                A(f"v_dot2c_f32_bf16 v{ACC+8*j+2*r}, v{slot+r}, v{lo}")
                A(f"v_dot2c_f32_bf16 v{ACC+8*j+2*r+1}, v{slot+r}, v{hi}")

    def ring_load(n, nxt):
        t, u, j = n // 6, (n % 6) // 3, n % 3
        r = (KN if nxt else KC) if t == 0 else (VN if nxt else VC)
        so = S_NXT if nxt else S_CUR
        A(f"buffer_load_dwordx4 v[{RING+4*n}:{RING+4*n+3}], v{V_OFF}, {r}, s{so} offen offset:{u*3072+j*128} nt")
    def advance(dst, src):
        A(f"s_add_u32 s{dst}, s{src}, {32*TILE}\ns_cmp_ge_u32 s{dst}, {HEAD_BYTES}")
        A(f"s_cselect_b32 s{S_T0}, {HEAD_BYTES}, 0\ns_sub_u32 s{dst}, s{dst}, s{S_T0}")

    A(f"s_cmp_ge_u32 s2, 256\ns_cbranch_scc1 {lab('end')}")
    A("s_load_dwordx16 s[4:19], s[0:1], 0\ns_load_dwordx8 s[20:27], s[0:1], 64")
    stamp(0)
    A(f"""v_lshrrev_b32 v{V_LANE}, 6, v0
    s_and_b32 s{S_H}, s2, 31
    v_readfirstlane_b32 s3, v{V_LANE}
    v_and_b32 v{V_LANE}, 63, v0
    s_lshr_b32 s{S_C}, s2, 5
    v_lshrrev_b32 v{V_O}, 3, v{V_LANE}
    v_and_b32 v{V_W}, 7, v{V_LANE}
    s_and_b32 s{S_WV}, s3, 3
    s_mul_i32 s{S_REG}, s{S_WV}, {RSZ}
    v_lshl_add_u32 v{V_E1}, v{V_W}, 3, v{V_O}
    v_lshlrev_b32 v{V_E1}, 2, v{V_E1}
    s_cmp_ge_u32 s3, 4
    s_cbranch_scc1 {lab('helper')}""")

    A(f"""s_setprio {cfg.prio}
    v_mul_u32_u24 v{V_OFF}, 384, v{V_O}
    v_lshl_add_u32 v{V_OFF}, v{V_W}, 4, v{V_OFF}
    s_mul_i32 s{S_T0}, s{S_H}, {cfg.STAG}
    s_lshl_b32 s{S_T1}, s{S_C}, 2
    s_add_u32 s{S_T0}, s{S_T0}, s{S_T1}
    s_add_u32 s{S_T0}, s{S_T0}, s3
    s_and_b32 s{S_T0}, s{S_T0}, {NTILES-1}
    s_mul_i32 s{S_CUR}, s{S_T0}, {TILE}
    s_mul_i32 s{S_T1}, s{S_H}, {HEAD_BYTES}
    s_waitcnt lgkmcnt(0)""")
    for r, p in ((28, 6), (32, 6), (36, 8), (40, 8)):
        A(f"s_add_u32 s{r}, s{p}, s{S_T1}\ns_addc_u32 s{r+1}, s{p+1}, 0\ns_mov_b32 s{r+2}, {HEAD_BYTES}\ns_mov_b32 s{r+3}, 0x20000")
    A(f"s_mov_b32 s{S_CNT}, {NP}\ns_mov_b32 s{S_T2}, s{S_REG}")
    A(f"{lab('prefill')}:")
    for n in range(12):
        t, u, j = n // 6, (n % 6) // 3, n % 3
        A(f"s_add_u32 m0, s{S_T2}, {t*TILE + j*896}")
        A(f"s_waitcnt vmcnt({D-1})")
        A(f"buffer_load_dwordx4 v{V_OFF}, {KC if t == 0 else VC}, s{S_CUR} offen offset:{u*3072+j*128} nt lds")
    advance(S_CUR, S_CUR)
    A(f"s_add_u32 s{S_T2}, s{S_T2}, {2*TILE}\ns_sub_u32 s{S_CNT}, s{S_CNT}, 1\ns_cmp_lg_u32 s{S_CNT}, 0\ns_cbranch_scc1 {lab('prefill')}")
    init_state()
    srd(RW, 26, WS_USED)
    stamp(1)
    A("s_barrier")
    stamp(2)
    for n in range(D):
        A(f"s_waitcnt vmcnt({D-1})")
        ring_load(n, False)
    A(f"s_waitcnt vmcnt({D})\ns_barrier")
    read_q()
    A(f"s_mov_b32 s{S_CNT}, {ROUNDS-NP}\ns_waitcnt lgkmcnt(0)")
    stamp(3)
    A(f"{lab('loop')}:")
    advance(S_NXT, S_CUR)
    A(f"s_cmp_eq_u32 s{S_CNT}, 1\ns_cselect_b32 s34, 0, {HEAD_BYTES}\ns_cselect_b32 s42, 0, {HEAD_BYTES}")
    issued = D
    for n in range(12):
        A(f"s_waitcnt vmcnt({issued - n - 1})")
        want = n + 1 + D
        if cfg.paired and n % 2 == 0:
            want = issued
        while issued < want:
            ring_load(issued % 12, issued >= 12)
            issued += 1
        step_compute(n, "s")
    assert issued == 12 + D
    A(f"s_mov_b32 s{S_CUR}, s{S_NXT}\ns_sub_u32 s{S_CNT}, s{S_CNT}, 1\ns_cmp_lg_u32 s{S_CNT}, 0\ns_cbranch_scc1 {lab('loop')}")
    stamp(4)
    A(f"s_mul_i32 s{S_T0}, s3, 784\ns_add_u32 s{S_T0}, s{S_T0}, {PART}")
    A(f"s_call_b64 {S_RET}, {lab('e1')}")
    A(f"s_waitcnt lgkmcnt(0)\ns_barrier")
    stamp(5)
    A(f"s_cmp_eq_u32 s3, 3\ns_cbranch_scc1 {lab('t2')}")
    A(f"s_cmp_eq_u32 s3, 1\ns_cbranch_scc1 {lab('t3')}")
    A(f"s_cmp_lg_u32 s3, 0\ns_cbranch_scc1 {lab('fin6')}")

    A(f"""v_mul_u32_u24 v{V_T5}, 784, v{V_W}
    v_add_u32 v{V_T5}, {PART+768}, v{V_T5}
    v_lshlrev_b32 v{V_T6}, 4, v{V_LANE}
    v_add_u32 v{V_T6}, {PART}, v{V_T6}
    ds_read_b64 v[48:49], v{V_T5}""")
    for w in range(8): A(f"ds_read_b128 v[{128+4*w}:{131+4*w}], v{V_T6} offset:{784*w}")
    A(f"""s_lshl_b32 s{S_T0}, s{S_H}, 3
    s_add_u32 s{S_T0}, s{S_T0}, s{S_C}
    s_lshl_b32 s{S_T0}, s{S_T0}, 9
    v_lshlrev_b32 v{V_T6}, 3, v{V_LANE}
    v_cmp_eq_u32 vcc, 48, v{V_LANE}
    s_waitcnt lgkmcnt(8)
    v_mov_b32 v50, v48""")
    oct_reduce("v_min_f32", 50)
    A("v_sub_f32 v51, v50, v48\nv_exp_f32 v51, v51\nv_mul_f32 v52, v51, v49")
    oct_reduce("v_add_f32", 52)
    for w in range(8):
        A(f"s_waitcnt lgkmcnt({7-w})")
        for r in range(4):
            op = "v_mul_f32_dpp" if w == 0 else "v_fmac_f32_dpp"
            A(f"{op} v{8+r}, v51, v{128+4*w+r} row_newbcast:{w} {DPPALL}")
    A(f"""v_cvt_pk_bf16_f32 v12, v8, v9
    v_cvt_pk_bf16_f32 v13, v10, v11
    v_cndmask_b32 v12, v12, v50, vcc
    v_cndmask_b32 v13, v13, v52, vcc
    v_min_u32 v12, -2, v12
    v_min_u32 v13, -2, v13
    s_mov_b32 exec_lo, -1
    s_mov_b32 exec_hi, 0x1ffff
    buffer_store_dwordx2 v[12:13], v{V_T6}, {RW}, s{S_T0} offen sc1""")
    if cfg.trace:
        A("s_waitcnt vmcnt(0)")
        stamp(6)
        dump_trace(7)
    A("s_endpgm")
    A(f"{lab('fin6')}:")
    dump_trace(6)
    A("s_endpgm")

    A(f"{lab('t3')}:")
    A(f"s_cmp_ge_u32 s2, 40\ns_cbranch_scc1 {lab('fin6')}")
    srd(RA, 4, 1280)
    srd(RB, 22, 1280)
    A(f"""s_lshl_b32 s{S_T0}, s2, 12
    s_add_u32 s{S_T0}, s{S_T0}, {P2}
    v_lshlrev_b32 v{V_T5}, 4, v{V_LANE}
    v_and_b32 v{V_T6}, 3, v{V_LANE}
    v_lshrrev_b32 v40, 4, v{V_LANE}
    v_lshl_add_u32 v{V_T6}, v{V_T6}, 2, v40
    v_lshlrev_b32 v{V_T6}, 1, v{V_T6}
    s_lshl_b32 s{S_T1}, s2, 5
    buffer_load_ushort v41, v{V_T6}, {RA}, s{S_T1} offen
    s_mov_b32 s{S_CNT}, 0x40000
    v_cmp_gt_u32 s[72:73], 32, v{V_LANE}""")
    def red4(b):
        A(f"v_permlane32_swap_b32 v{b}, v{b+2}\nv_permlane32_swap_b32 v{b+1}, v{b+3}")
        A(f"v_add_f32 v{b}, v{b}, v{b+2}\nv_add_f32 v{b+1}, v{b+1}, v{b+3}")
        A(f"v_permlane16_swap_b32 v{b}, v{b+1}\nv_add_f32 v{b}, v{b}, v{b+1}")
        A(f"v_add_f32_dpp v{b}, v{b}, v{b} row_ror:8 {DPPALL}\nv_add_f32_dpp v{b}, v{b}, v{b} row_ror:4 {DPPALL}")
    A(f"{lab('t3f')}:")
    A(f"buffer_load_dwordx4 v[16:19], v{V_T5}, {RW}, s{S_T0} offen offset:2048 sc1")
    A(f"buffer_load_dwordx4 v[20:23], v{V_T5}, {RW}, s{S_T0} offen offset:3072 sc1")
    A(f"s_sub_u32 s{S_CNT}, s{S_CNT}, 1\ns_waitcnt vmcnt(0)")
    for r in range(4): A(f"v_cndmask_b32 v{20+r}, 0, v{20+r}, s[72:73]")
    A(f"""v_max3_u32 v24, v16, v17, v18
    v_max3_u32 v24, v24, v19, v20
    v_max3_u32 v24, v24, v21, v22
    v_max_u32 v24, v24, v23
    v_cmp_eq_u32 vcc, -1, v24
    s_cmp_eq_u32 s{S_CNT}, 0
    s_cbranch_scc1 {lab('t3g')}
    s_cbranch_vccnz {lab('t3f')}
    {lab('t3g')}:""")
    for r in range(4): A(f"v_add_f32 v{16+r}, v{16+r}, v{20+r}")
    red4(16)
    A(f"v_cvt_pk_bf16_f32 v16, v16, v16\nv_and_b32 v16, 0xffff0000, v16\nv_lshlrev_b32 v41, 16, v41")
    A(f"{lab('t3p')}:")
    A(f"buffer_load_dwordx4 v[8:11], v{V_T5}, {RW}, s{S_T0} offen sc1")
    A(f"buffer_load_dwordx4 v[12:15], v{V_T5}, {RW}, s{S_T0} offen offset:1024 sc1")
    A(f"""s_sub_u32 s{S_CNT}, s{S_CNT}, 1
    s_waitcnt vmcnt(1)
    v_max3_u32 v24, v8, v9, v10
    s_waitcnt vmcnt(0)
    v_max3_u32 v25, v11, v12, v13
    v_max3_u32 v24, v24, v14, v15
    v_max_u32 v24, v24, v25
    v_cmp_eq_u32 vcc, -1, v24
    s_cmp_le_i32 s{S_CNT}, 0
    s_cbranch_scc1 {lab('t3q')}
    s_cbranch_vccnz {lab('t3p')}
    {lab('t3q')}:""")
    stamp(6)
    for r in range(4): A(f"v_add_f32 v{8+r}, v{8+r}, v{12+r}")
    red4(8)
    A(f"""v_cvt_pk_bf16_f32 v8, v8, v8
    v_and_b32 v8, 0xffff0000, v8
    v_add_f32 v8, v41, v8
    v_cvt_pk_bf16_f32 v8, v8, v8
    v_and_b32 v8, 0xffff0000, v8
    v_add_f32 v8, v8, v16
    v_cvt_pk_bf16_f32 v8, v8, v8
    s_mov_b32 exec_lo, 0x000f000f
    s_mov_b32 exec_hi, 0x000f000f
    buffer_store_short v8, v{V_T6}, {RB}, s{S_T1} offen""")
    if cfg.trace:
        A("s_waitcnt vmcnt(0)")
        stamp(7)
        dump_trace(8)
    A("s_endpgm")

    A(f"{lab('e1')}:")
    for j in range(3):
        for e in range(4): A(f"v_permlane32_swap_b32 v{ACC+8*j+e}, v{ACC+8*j+e+4}")
    A(f"v_add_f32_dpp v{V_L}, v{V_L}, v{V_L} row_ror:8 {DPPALL}")
    for j in range(3):
        for e in range(4): A(f"v_add_f32 v{ACC+8*j+e}, v{ACC+8*j+e}, v{ACC+8*j+e+4}")
    A(f"v_mov_b32 v{V_T}, v{V_L}\nv_add_u32 v{V_T5}, s{S_T0}, v{V_E1}")
    for j in range(3):
        for e in range(2): A(f"v_permlane16_swap_b32 v{ACC+8*j+e}, v{ACC+8*j+e+2}")
    A(f"v_permlane16_swap_b32 v{V_L}, v{V_T}")
    for j in range(3):
        for e in range(2): A(f"v_add_f32 v{ACC+8*j+e}, v{ACC+8*j+e}, v{ACC+8*j+e+2}")
    A(f"v_add_f32 v{V_L}, v{V_L}, v{V_T}\nv_mov_b32 v{V_T6}, s{S_T0}\nv_mov_b32 v{V_T}, v{V_L}")
    for j in range(3):
        A(f"v_add_f32_dpp v{ACC+8*j}, v{ACC+8*j}, v{ACC+8*j} row_ror:8 row_mask:0xf bank_mask:0x3")
    A(f"v_permlane32_swap_b32 v{V_L}, v{V_T}")
    for j in range(3):
        A(f"v_add_f32_dpp v{ACC+8*j}, v{ACC+8*j+1}, v{ACC+8*j+1} row_ror:8 row_mask:0xf bank_mask:0xc")
    A(f"v_add_f32 v{V_L}, v{V_L}, v{V_T}")
    for j in range(3): A(f"ds_write_b32 v{V_T5}, v{ACC+8*j} offset:{256*j}")
    A(f"ds_write2_b32 v{V_T6}, v{V_NML}, v{V_L} offset0:192 offset1:193")
    A(f"s_setpc_b64 {S_RET}")

    A(f"{lab('helper')}:")
    A(f"""v_mul_u32_u24 v{V_OFF}, {20*12288}, v{V_O}
    v_lshl_add_u32 v{V_OFF}, v{V_W}, 4, v{V_OFF}
    v_lshlrev_b32 v{V_T5}, 4, v{V_LANE}
    v_lshlrev_b32 v{V_T6}, 2, v{V_LANE}
    s_mul_i32 s{S_T0}, s{S_WV}, {160*12288}
    s_mul_i32 s{S_T1}, s{S_H}, 384
    s_add_u32 s{S_CUR}, s{S_T0}, s{S_T1}
    s_waitcnt lgkmcnt(0)""")
    srd(RB, 4, 1280)
    srd(RA, 10, 7864320)
    A(f"buffer_load_dwordx4 v[52:55], v{V_T5}, {RB}, 0 offen\nbuffer_load_dword v56, v{V_T6}, {RB}, 0 offen offset:1024")
    def wq_row(i):
        b = RING + 12 * (i % 16)
        A(f"s_add_u32 s{S_T0}, s{S_CUR}, {i*12288}")
        for j in range(3):
            A(f"buffer_load_dwordx4 v[{b+4*j}:{b+4*j+3}], v{V_OFF}, {RA}, s{S_T0} offen offset:{128*j} {cfg.wq_pol}")
    for i in range(16): wq_row(i)
    srd(RW, 26, WS_USED)
    for i in range(24): A(f"v_mov_b32 v{ACC+i}, 0")
    A("s_waitcnt vmcnt(48)")
    for k in range(5):
        A(f"v_lshlrev_b32 v{32+2*k}, 16, v{52+k}\nv_and_b32 v{33+2*k}, 0xffff0000, v{52+k}")
    A("v_add_f32 v57, v32, v33")
    for k in range(2, 10): A(f"v_add_f32 v57, v57, v{32+k}")
    oct_reduce("v_add_f32", 57); xoct_reduce("v_add_f32", 57, 58)
    A(f"v_mul_f32 v57, {f32(1/640)}, v57")
    A("v_sub_f32 v59, v32, v57\nv_mul_f32 v60, v59, v59")
    for k in range(1, 10): A(f"v_sub_f32 v59, v{32+k}, v57\nv_fmac_f32 v60, v59, v59")
    oct_reduce("v_add_f32", 60); xoct_reduce("v_add_f32", 60, 58)
    A(f"""v_mul_f32 v60, {f32(1/640)}, v60
    v_cvt_pk_bf16_f32 v58, v57, v60
    v_lshlrev_b32 v57, 16, v58
    v_and_b32 v60, 0xffff0000, v58
    v_add_f32 v60, {f32(1e-5)}, v60
    v_cvt_pk_bf16_f32 v60, v60, v60
    v_and_b32 v60, 0xffff0000, v60
    v_sqrt_f32 v60, v60
    v_cvt_pk_bf16_f32 v60, v60, v60
    v_and_b32 v60, 0xffff0000, v60
    v_rcp_f32 v61, v60""")
    for k in range(5):
        a, b = 32 + 2*k, 33 + 2*k
        A(f"""v_sub_f32 v{a}, v{a}, v57
        v_sub_f32 v{b}, v{b}, v57
        v_cvt_pk_bf16_f32 v58, v{a}, v{b}
        v_lshlrev_b32 v{a}, 16, v58
        v_and_b32 v{b}, 0xffff0000, v58
        v_mul_f32 v58, v{a}, v61
        v_mul_f32 v59, v{b}, v61
        v_fma_f32 v{a}, -v58, v60, v{a}
        v_fma_f32 v{b}, -v59, v60, v{b}
        v_fmac_f32 v58, v{a}, v61
        v_fmac_f32 v59, v{b}, v61
        v_cvt_pk_bf16_f32 v58, v58, v59
        v_lshlrev_b32 v{a}, 16, v58
        v_and_b32 v{b}, 0xffff0000, v58""")
    A(f"""v_lshlrev_b32 v58, 5, v{V_LANE}
    v_add_u32 v58, {XN}, v58
    v_lshlrev_b32 v59, 3, v{V_LANE}
    v_add_u32 v59, {XN+2048}, v59
    ds_write_b128 v58, v[32:35]
    ds_write_b128 v58, v[36:39] offset:16
    ds_write_b64 v59, v[40:41]
    s_mul_i32 s{S_T0}, s{S_WV}, 640
    s_add_u32 s{S_T0}, s{S_T0}, {XN}
    v_mul_u32_u24 v58, 80, v{V_O}
    v_add_u32 v58, s{S_T0}, v58
    s_waitcnt lgkmcnt(0)""")
    for k in range(5): A(f"ds_read_b128 v[{32+4*k}:{35+4*k}], v58 offset:{16*k}")
    A("s_waitcnt lgkmcnt(0)")
    stamp(1)
    for i in range(20):
        b = RING + 12 * (i % 16)
        A(f"v_lshrrev_b32 v52, 16, v{32+i}")
        A(f"s_waitcnt vmcnt({45 if i < 4 else 3*(19-i)})")
        for j in range(3):
            for r in range(4):
                A(f"v_dot2c_f32_bf16 v{ACC+8*j+2*r}, v{b+4*j+r}, v52")
                A(f"v_dot2c_f32_bf16 v{ACC+8*j+2*r+1}, v{b+4*j+r}, v{32+i}")
        if i < 4: wq_row(16 + i)
    A(f"s_mul_i32 s{S_T0}, s{S_WV}, 784\ns_add_u32 s{S_T0}, s{S_T0}, {QP}")
    A(f"s_call_b64 {S_RET}, {lab('e1')}")
    A("s_waitcnt lgkmcnt(0)")
    stamp(2)
    A("s_barrier")
    A(f"s_cmp_lg_u32 s3, 4\ns_cbranch_scc1 {lab('qdone')}")
    A(f"v_lshlrev_b32 v{V_T5}, 4, v{V_LANE}\nv_add_u32 v{V_T5}, {QP}, v{V_T5}")
    for w in range(4): A(f"ds_read_b128 v[{64+4*w}:{67+4*w}], v{V_T5} offset:{784*w}")
    A(f"v_lshlrev_b32 v{V_T6}, 3, v{V_LANE}\nv_add_u32 v{V_T6}, {QF}, v{V_T6}\ns_waitcnt lgkmcnt(0)")
    for r in range(4):
        A(f"v_add_f32 v{64+r}, v{64+r}, v{68+r}\nv_add_f32 v{72+r}, v{72+r}, v{76+r}\nv_add_f32 v{64+r}, v{64+r}, v{72+r}")
    A(f"v_cvt_pk_bf16_f32 v64, v64, v65\nv_cvt_pk_bf16_f32 v65, v66, v67\nds_write_b64 v{V_T6}, v[64:65]\ns_waitcnt lgkmcnt(0)")
    A(f"{lab('qdone')}:\ns_barrier")
    stamp(3)
    read_q()
    A(f"""v_lshrrev_b32 v62, 1, v{V_LANE}
    v_lshlrev_b32 v62, 12, v62
    v_and_b32 v69, 1, v{V_LANE}
    v_lshl_add_u32 v62, v69, 5, v62
    v_lshlrev_b32 v63, 12, v{V_O}
    v_lshl_add_u32 v63, v{V_W}, 3, v63
    v_add_u32 v63, {32*4096}, v63
    s_lshl_b32 s72, s2, 6
    s_add_u32 s72, s72, {P2 + 32*64}""")
    A(f"s_cmp_lg_u32 s3, 7\ns_cbranch_scc1 {lab('noclr')}")
    A(f"""v_mov_b32 v64, -1
    v_mov_b32 v65, -1
    v_mov_b32 v66, -1
    v_mov_b32 v67, -1
    s_lshl_b32 s{S_T0}, s{S_H}, 3
    s_add_u32 s{S_T0}, s{S_T0}, s{S_C}
    s_lshl_b32 s{S_T0}, s{S_T0}, 9
    v_lshlrev_b32 v68, 3, v{V_LANE}
    buffer_store_dwordx2 v[64:65], v68, {RW}, s{S_T0} offen sc1
    v_lshrrev_b32 v68, 2, v{V_LANE}
    v_lshlrev_b32 v68, 12, v68
    v_and_b32 v69, 3, v{V_LANE}
    v_lshl_add_u32 v68, v69, 4, v68
    s_mul_i32 s{S_T0}, s{S_C}, {5*4096}
    s_lshl_b32 s{S_T1}, s{S_H}, 6
    s_add_u32 s{S_T0}, s{S_T0}, s{S_T1}
    s_add_u32 s{S_T0}, s{S_T0}, {P2}
    s_mov_b64 exec, 0xfffff
    buffer_store_dwordx4 v[64:67], v68, {RW}, s{S_T0} offen sc1
    s_mov_b64 exec, -1
    s_cmp_ge_u32 s2, 24
    s_cbranch_scc1 {lab('noclrf')}
    buffer_store_dwordx4 v[64:67], v62, {RW}, s72 offen sc1
    buffer_store_dwordx4 v[64:67], v62, {RW}, s72 offen offset:16 sc1
    buffer_store_dwordx2 v[64:65], v63, {RW}, s72 offen sc1
    {lab('noclrf')}:""")
    srd(RC, 24, 256)
    A(f"""v_mov_b32 v68, 1
    s_waitcnt vmcnt(0)
    s_mov_b64 exec, 1
    buffer_atomic_add v68, off, {RC}, 0
    s_mov_b64 exec, -1
    {lab('noclr')}:""")
    init_state()
    A(f"v_lshlrev_b32 v{V_OFF}, 4, v{V_LANE}\nv_add_u32 v{V_OFF}, s{S_REG}, v{V_OFF}\ns_mov_b32 s{S_CNT}, {NP}")
    A(f"{lab('hloop')}:")
    for n in range(12): A(f"ds_read_b128 v[{RING+4*n}:{RING+4*n+3}], v{V_OFF} offset:{1024*n}")
    A(f"v_add_u32 v{V_OFF}, {2*TILE}, v{V_OFF}\ns_waitcnt lgkmcnt(0)")
    for n in range(12): step_compute(n, "h")
    A(f"s_sub_u32 s{S_CNT}, s{S_CNT}, 1\ns_cmp_lg_u32 s{S_CNT}, 0\ns_cbranch_scc1 {lab('hloop')}")
    A(f"s_mul_i32 s{S_T0}, s3, 784\ns_add_u32 s{S_T0}, s{S_T0}, {PART}")
    A(f"s_call_b64 {S_RET}, {lab('e1')}")
    stamp(4)
    A(f"s_cmp_eq_u32 s3, 7\ns_cbranch_scc1 {lab('w7')}")
    srd(RA, 12, 7864320)
    A(f"""s_mul_i32 s{S_T0}, s{S_H}, {192*1280}
    s_mul_i32 s{S_T1}, s{S_WV}, {64*1280}
    s_add_u32 s{S_T0}, s{S_T0}, s{S_T1}
    s_mul_i32 s{S_T1}, s{S_C}, 160
    s_add_u32 s{S_T0}, s{S_T0}, s{S_T1}
    s_add_u32 s{S_T1}, s{S_T0}, {32*1280}""")
    for n in range(5):
        A(f"""v_add_u32 v64, {64*n}, v{V_LANE}
        v_mul_u32_u24 v65, 6554, v64
        v_lshrrev_b32 v65, 16, v65
        v_mul_u32_u24 v66, 10, v65
        v_sub_u32 v66, v64, v66
        v_mul_u32_u24 v65, 1280, v65
        v_lshl_add_u32 v{68+n}, v66, 4, v65""")
    for p in range(2):
        for n in range(5):
            A(f"s_add_u32 m0, s{S_REG}, {p*5120 + n*1024}")
            A(f"buffer_load_dwordx4 v{68+n}, {RA}, s{S_T0 if p == 0 else S_T1} offen {cfg.wo_pol} lds")
    A(f"s_branch {lab('hwait')}")
    A(f"{lab('w7')}:\ns_cmp_ge_u32 s2, 24\ns_cbranch_scc1 {lab('noffn')}")
    srd(RA, 16, 1966080); srd(RB, 18, 1966080)
    A(f"""v_mul_u32_u24 v{V_OFF}, {80*3072}, v{V_O}
    v_lshl_add_u32 v{V_OFF}, v{V_W}, 4, v{V_OFF}
    v_mul_u32_u24 v59, 320, v{V_O}
    v_add_u32 v59, {XN}, v59
    s_lshl_b32 s{S_CUR}, s2, 7
    s_mov_b32 s{S_CNT}, 10""")
    for i in range(24): A(f"v_mov_b32 v{ACC+i}, 0")
    A(f"{lab('f1')}:")
    A("ds_read_b128 v[32:35], v59\nds_read_b128 v[36:39], v59 offset:16")
    for r in range(8):
        A(f"s_add_u32 s{S_T0}, s{S_CUR}, {r*3072}")
        A(f"buffer_load_dwordx4 v[{64+4*r}:{67+4*r}], v{V_OFF}, {RA}, s{S_T0} offen {cfg.ffn_pol}")
        A(f"buffer_load_dwordx4 v[{96+4*r}:{99+4*r}], v{V_OFF}, {RB}, s{S_T0} offen {cfg.ffn_pol}")
    A(f"s_add_u32 s{S_CUR}, s{S_CUR}, {8*3072}\nv_add_u32 v59, 32, v59\ns_waitcnt lgkmcnt(0)")
    for r in range(8):
        A(f"v_lshrrev_b32 v52, 16, v{32+r}\ns_waitcnt vmcnt({14-2*r})")
        for k in range(4):
            A(f"v_dot2c_f32_bf16 v{8+2*k}, v{64+4*r+k}, v52\nv_dot2c_f32_bf16 v{9+2*k}, v{64+4*r+k}, v{32+r}")
            A(f"v_dot2c_f32_bf16 v{16+2*k}, v{96+4*r+k}, v52\nv_dot2c_f32_bf16 v{17+2*k}, v{96+4*r+k}, v{32+r}")
    A(f"s_sub_u32 s{S_CNT}, s{S_CNT}, 1\ns_cmp_lg_u32 s{S_CNT}, 0\ns_cbranch_scc1 {lab('f1')}")
    A(f"s_mov_b32 s{S_T0}, {QP}\ns_call_b64 {S_RET}, {lab('e1')}")
    A(f"""v_cvt_pk_bf16_f32 v52, v8, v16
    v_lshlrev_b32 v53, 16, v52
    v_and_b32 v54, 0xffff0000, v52
    v_mul_f32 v55, v53, v53
    v_mul_f32 v55, v55, v53
    v_fmamk_f32 v55, v55, {f32(0.044715)}, v53
    v_mul_f32 v55, {f32(-2*0.7978845608028654*L2E)}, v55
    v_exp_f32 v55, v55
    v_add_f32 v55, 1.0, v55
    v_rcp_f32 v55, v55
    v_mul_f32 v55, v53, v55
    v_cvt_pk_bf16_f32 v55, v55, v55
    v_and_b32 v55, 0xffff0000, v55
    v_mul_f32 v55, v55, v54
    v_cvt_pk_bf16_f32 v55, v55, v55
    v_and_b32 v40, 0xffff0000, v55""")
    srd(RA, 20, 1966080)
    A(f"""v_lshlrev_b32 v{V_OFF}, 4, v{V_LANE}
    v_lshlrev_b32 v59, 2, v{V_LANE}
    s_mul_i32 s{S_CUR}, s2, {64*1280}
    s_mov_b32 s{S_CNT}, 0""")
    for i in range(10): A(f"v_mov_b32 v{ACC+i}, 0")
    A(f"{lab('f2')}:")
    for r in range(8):
        A(f"s_add_u32 s{S_T0}, s{S_CUR}, {r*8*1280}")
        A(f"buffer_load_dwordx4 v[{64+4*r}:{67+4*r}], v{V_OFF}, {RA}, s{S_T0} offen {cfg.ffn_pol}")
        A(f"buffer_load_dword v{96+r}, v59, {RA}, s{S_T0} offen offset:1024 {cfg.ffn_pol}")
    A(f"s_add_u32 s{S_CUR}, s{S_CUR}, 1280")
    for r in range(8):
        A(f"""s_add_u32 s{S_T0}, s{S_CNT}, {r}
        v_readlane_b32 s{S_T1}, v40, s{S_T0}
        s_lshr_b32 s{S_T2}, s{S_T1}, 16
        s_waitcnt vmcnt({14-2*r})""")
        for k in range(4):
            A(f"v_dot2c_f32_bf16 v{8+2*k}, s{S_T2}, v{64+4*r+k}\nv_dot2c_f32_bf16 v{9+2*k}, s{S_T1}, v{64+4*r+k}")
        A(f"v_dot2c_f32_bf16 v16, s{S_T2}, v{96+r}\nv_dot2c_f32_bf16 v17, s{S_T1}, v{96+r}")
    A(f"s_add_u32 s{S_CNT}, s{S_CNT}, 8\ns_cmp_lg_u32 s{S_CNT}, 64\ns_cbranch_scc1 {lab('f2')}")
    for i in range(10): A(f"v_min_u32 v{8+i}, -2, v{8+i}")
    A(f"""buffer_store_dwordx4 v[8:11], v62, {RW}, s72 offen sc1
    buffer_store_dwordx4 v[12:15], v62, {RW}, s72 offen offset:16 sc1
    buffer_store_dwordx2 v[16:17], v63, {RW}, s72 offen sc1""")
    A(f"{lab('noffn')}:")
    srd(RC, 24, 256)
    A(f"s_mov_b32 s{S_CNT}, 0x40000")
    A(f"""{lab('cwait')}:
    buffer_load_dword v64, off, {RC}, 0 sc1
    s_sub_u32 s{S_CNT}, s{S_CNT}, 1
    s_waitcnt vmcnt(0)
    v_readfirstlane_b32 s{S_T0}, v64
    s_cmp_eq_u32 s{S_CNT}, 0
    s_cbranch_scc1 {lab('hwait')}
    s_cmp_ge_u32 s{S_T0}, 256
    s_cbranch_scc1 {lab('hwait')}
    s_sleep 16
    s_branch {lab('cwait')}""")
    A(f"{lab('hwait')}:\ns_waitcnt vmcnt(0) lgkmcnt(0)")
    if cfg.trace:
        A("s_memrealtime s[84:85]")
    A("s_barrier")
    stamp(5)

    A(f"{lab('t2')}:")
    A(f"""v_lshrrev_b32 v40, 4, v{V_LANE}
    v_lshlrev_b32 v{V_T5}, 9, v{V_W}
    v_lshl_add_u32 v41, v40, 4, v{V_T5}
    s_lshl_b32 s{S_T0}, s{S_H}, 12
    s_mov_b32 s{S_CNT}, 0x40000""")
    def gather():
        A(f"buffer_load_dwordx2 v[48:49], v{V_T5}, {RW}, s{S_T0} offen offset:384 sc1")
        for t in range(6):
            A(f"buffer_load_dwordx4 v[{128+4*t}:{131+4*t}], v41, {RW}, s{S_T0} offen offset:{64*t} sc1")
    gather()
    A(f"""v_bfe_u32 v42, v{V_LANE}, 2, 2
    v_lshl_add_u32 v42, v40, 3, v42
    v_mul_u32_u24 v42, 160, v42
    v_and_b32 v43, 3, v{V_LANE}
    v_lshl_add_u32 v42, v43, 3, v42
    s_sub_u32 s{S_T1}, s3, 3
    s_lshl_b32 s{S_T2}, s{S_T1}, 5
    v_add_u32 v42, s{S_T2}, v42
    v_add_u32 v43, {2*RSZ}, v42""")
    for t in range(6):
        for hh in range(2):
            base, off = (42, (t // 2) * RSZ) if t < 4 else (43, 0)
            A(f"ds_read_b64_tr_b16 v[{160+4*t+2*hh}:{161+4*t+2*hh}], v{base} offset:{off + (t%2)*5120 + hh*640}")
    A(f"""s_mul_i32 s{S_T2}, s{S_C}, 5
    s_add_u32 s{S_T1}, s{S_T1}, s{S_T2}
    s_lshl_b32 s{S_T1}, s{S_T1}, 12
    s_lshl_b32 s{S_T2}, s{S_H}, 6
    s_add_u32 s{S_T1}, s{S_T1}, s{S_T2}
    s_add_u32 s{S_T1}, s{S_T1}, {P2}
    v_lshlrev_b32 v47, 2, v{V_LANE}
    s_branch {lab('t2c')}""")
    A(f"{lab('t2p')}:")
    gather()
    A(f"{lab('t2c')}:\ns_sub_u32 s{S_CNT}, s{S_CNT}, 1\ns_waitcnt vmcnt(6)\nv_max_u32 v50, v48, v49")
    for t in range(6):
        A(f"s_waitcnt vmcnt({5-t})\nv_max3_u32 v50, v50, v{128+4*t}, v{129+4*t}\nv_max3_u32 v50, v50, v{130+4*t}, v{131+4*t}")
    A(f"""v_cmp_eq_u32 vcc, -1, v50
    s_cmp_eq_u32 s{S_CNT}, 0
    s_cbranch_scc1 {lab('t2g')}
    s_cbranch_vccnz {lab('t2p')}
    {lab('t2g')}:""")
    stamp(6)
    A("s_waitcnt lgkmcnt(0)")
    for t in range(6):
        A(f"v_mfma_f32_16x16x32_bf16 v[8:11], v[{128+4*t}:{131+4*t}], v[{160+4*t}:{163+4*t}], {'0' if t == 0 else 'v[8:11]'}")
    A("v_mov_b32 v50, v48")
    oct_reduce("v_min_f32", 50)
    A("v_sub_f32 v51, v50, v48\nv_exp_f32 v51, v51\nv_mul_f32 v52, v51, v49")
    oct_reduce("v_add_f32", 52)
    A("v_rcp_f32 v52, v52\nv_mul_f32 v51, v51, v52")
    for r in range(4):
        A(f"v_mov_b32_dpp v{12+r}, v51 row_newbcast:{r} row_mask:0x5 bank_mask:0xf")
    for r in range(4):
        A(f"v_mov_b32_dpp v{12+r}, v51 row_newbcast:{4+r} row_mask:0xa bank_mask:0xf")
    A("""v_mul_f32 v16, v8, v12
    v_fmac_f32 v16, v9, v13
    v_fmac_f32 v16, v10, v14
    v_fmac_f32 v16, v11, v15
    v_mov_b32 v17, v16
    v_permlane16_swap_b32 v16, v17
    v_add_f32 v16, v16, v17
    v_min_u32 v16, -2, v16
    s_mov_b64 exec, 0xffff""")
    A(f"buffer_store_dword v16, v47, {RW}, s{S_T1} offen sc1")
    if cfg.trace:
        A("s_waitcnt vmcnt(0)")
        stamp(7)
        dump_trace(8)
    A(f"{lab('end')}:\ns_endpgm")

    body, nfix = hazard.fix("\n".join(L))
    body = "\n".join(("    " + x if not x.endswith(":") else x) for x in body.split("\n"))
    desc = f""".section .rodata,"a"
.p2align 6
.amdhsa_kernel {nm}
  .amdhsa_next_free_vgpr 256
  .amdhsa_next_free_sgpr 96
  .amdhsa_accum_offset 256
  .amdhsa_group_segment_fixed_size 0
  .amdhsa_kernarg_size 96
  .amdhsa_user_sgpr_count 2
  .amdhsa_user_sgpr_kernarg_segment_ptr 1
  .amdhsa_system_sgpr_workgroup_id_x 1
  .amdhsa_float_denorm_mode_32 3
.end_amdhsa_kernel
"""
    code = f".text\n.globl {nm}\n.p2align 8\n.type {nm},@function\n{nm}:\n{body}\n{desc}"
    return code, LDS, nfix

def write_main(path, cfg):
    code, lds, nfix = gen(cfg)
    src = HEADER + f"; @launch grid=(256,1,1) block=(512,1,1) lds={lds}\n" + '.amdgcn_target "amdgcn-amd-amdhsa--gfx950"\n' + code
    open(path, "w").write(src)
    return lds, nfix

if __name__ == "__main__":
    print(write_main("parallel_sum__mha_block_cached__geglu_ffn__decode.s", Cfg()))
```
